```python
import torch

def _softmax(x, axis=-1):
    return torch.softmax(x, dim=axis)
def _gelu(x):
    return torch.nn.functional.gelu(x, approximate="tanh")
def _silu(x):
    return torch.nn.functional.silu(x)
def _sigmoid(x):
    return torch.sigmoid(x)
def _layernorm(x, axis=-1, eps=1e-5):
    m = x.mean(dim=axis, keepdim=True)
    v = x.var(dim=axis, keepdim=True, unbiased=False)
    return (x - m) / torch.sqrt(v + eps)
def _scatter_add(tgt, idx, src, axis=0):
    return tgt.clone().index_add_(axis, idx, src)
def _segment_sum(src, seg, n):
    out = torch.zeros((n,) + src.shape[1:], dtype=src.dtype)
    return out.index_add_(0, seg, src)
def _pad(x, pw):
    flat = tuple(v for pair in reversed(pw) for v in pair)
    return torch.nn.functional.pad(x, flat)

kernel_name = 'concat_heads__sliding_block__sliding_block__prompt'

def setup_inputs():

    _w = (lambda a: (lambda t: t.to(torch.bfloat16) if t.is_floating_point() else t)(torch.as_tensor(a)))
    def _A_setup():
        B, S, D = 1, 2048, 640
        return {
            "x": _w((lambda *s: torch.randn(*s, dtype=torch.bfloat16) * 0.2)(B, S, D)),
            "wqkv": _w((lambda *s: torch.randn(*s, dtype=torch.bfloat16) * 0.2)(D, 3 * D)),
            "wo": _w((lambda *s: torch.randn(*s, dtype=torch.bfloat16) * 0.05)(D, D)),
        }
    _A_in = _A_setup()

    def _B_setup():
        B, S, D = 1, 2048, 640
        return {
            "x": _w((lambda *s: torch.randn(*s, dtype=torch.bfloat16) * 0.2)(B, S, D)),
            "wqkv": _w((lambda *s: torch.randn(*s, dtype=torch.bfloat16) * 0.2)(D, 3 * D)),
            "wo": _w((lambda *s: torch.randn(*s, dtype=torch.bfloat16) * 0.05)(D, D)),
        }
    _B_in = _B_setup()

    return {
        "A_x": _A_in["x"],
        "A_wqkv": _A_in["wqkv"],
        "A_wo": _A_in["wo"],
        "B_x": _B_in["x"],
        "B_wqkv": _B_in["wqkv"],
        "B_wo": _B_in["wo"],
    }

def reference(A_x, A_wqkv, A_wo, B_x, B_wqkv, B_wo):
    def _A_ref(x, wqkv, wo):
        B, S, D = x.shape
        H = 32; Dh = D // H; W = 256
        qkv = (lambda x, *d: x.permute(*d))((x @ wqkv).reshape(B, S, 3, H, Dh), 2, 0, 3, 1, 4)
        q, k, v = qkv[0], qkv[1], qkv[2]
        scores = torch.einsum("bhqd,bhkd->bhqk", q, k) * (Dh ** -0.5)
        idx = torch.arange(S)
        mask = (idx[:, None] - idx[None, :] >= 0) & (idx[:, None] - idx[None, :] < W)
        scores = torch.where(mask[None, None], scores, -1e9)
        p = _softmax(scores, axis=-1)
        o = torch.einsum("bhqk,bhkd->bhqd", p, v)
        return (lambda x, *d: x.permute(*d))(o, 0, 2, 1, 3).reshape(B, S, D) @ wo

    def _B_ref(x, wqkv, wo):
        B, S, D = x.shape
        H = 32; Dh = D // H; W = 256
        qkv = (lambda x, *d: x.permute(*d))((x @ wqkv).reshape(B, S, 3, H, Dh), 2, 0, 3, 1, 4)
        q, k, v = qkv[0], qkv[1], qkv[2]
        scores = torch.einsum("bhqd,bhkd->bhqk", q, k) * (Dh ** -0.5)
        idx = torch.arange(S)
        mask = (idx[:, None] - idx[None, :] >= 0) & (idx[:, None] - idx[None, :] < W)
        scores = torch.where(mask[None, None], scores, -1e9)
        p = _softmax(scores, axis=-1)
        o = torch.einsum("bhqk,bhkd->bhqd", p, v)
        return (lambda x, *d: x.permute(*d))(o, 0, 2, 1, 3).reshape(B, S, D) @ wo

    a = _A_ref(A_x, A_wqkv, A_wo)
    b = _B_ref(B_x, B_wqkv, B_wo)
    return torch.concatenate([a, b], axis=-1)
```

```python
class Asm:
    def __init__(self):
        self.L = []
        self.vm = []
        self.lg = []
        self.uid = 0
    def __call__(self, s):
        self.L.append("    " + s)
    def c(self, s):
        self.L.append("    ; " + s)
    def label(self, s):
        self.L.append(s + ":")
    def newlabel(self, p):
        self.uid += 1
        return f"{p}_{self.uid}"
    def vmop(self, s, tag=None):
        self(s); self.vm.append(tag)
    def dsop(self, s, tag=None):
        self(s); self.lg.append(tag)
    def _need(self, fifo, tags):
        if not isinstance(tags, (list, tuple, set)) or (isinstance(tags, tuple)):
            tags = [tags]
        last = -1
        for i, t in enumerate(fifo):
            if t in tags: last = i
        return None if last < 0 else len(fifo) - 1 - last
    def wait(self, vm=None, lg=None, vm0=False, lg0=False):
        parts = []
        if vm0:
            parts.append("vmcnt(0)"); self.vm = []
        elif vm is not None:
            n = self._need(self.vm, vm)
            if n is not None:
                n = min(n, 63)
                parts.append(f"vmcnt({n})")
                self.vm = self.vm[len(self.vm) - n:] if n else []
        if lg0:
            parts.append("lgkmcnt(0)"); self.lg = []
        elif lg is not None:
            n = self._need(self.lg, lg)
            if n is not None:
                n = min(n, 15)
                parts.append(f"lgkmcnt({n})")
                self.lg = self.lg[len(self.lg) - n:] if n else []
        if parts:
            self("s_waitcnt " + " ".join(parts))
            return True
        return False
    def text(self):
        return "\n".join(self.L) + "\n"

def v(a, n=1): return f"v{a}" if n == 1 else f"v[{a}:{a+n-1}]"
def a(a_, n=1): return f"a{a_}" if n == 1 else f"a[{a_}:{a_+n-1}]"
def s(a_, n=1): return f"s{a_}" if n == 1 else f"s[{a_}:{a_+n-1}]"
```

```python
import sys, math, struct
from asmlib import Asm, v, a, s

NAME = "concat_heads__sliding_block__sliding_block__prompt"

def f32bits(x): return struct.unpack("<I", struct.pack("<f", x))[0]

class Cfg:
    stamp = False
    D = 5
    R = 8
    stagger = True
    force_slow = False
    spin_max = 1 << 18

WS_KV = 0
WS_O = 256 * 40960
WS_FLAG = 16 << 20
WS_FLAG_O = WS_FLAG + 32768
WS_EPOCH = WS_FLAG + 131072
WS_STAMP = 20 << 20
WS_SIZE = 32 << 20

U = 20480
X_UNIT = [0, 5, 1]
W_UNIT = [7, 2, 4, 6]
Q_UNIT = [3, 4, 5, 6, 7]
KST_UNIT, VST_UNIT, QST_UNIT = 0, 1, 5
LDS_BYTES = 163840

SX, SW, SWO, SOUT, SWS, SDBG = 8, 12, 16, 20, 24, 28
sB, sR, sC, sWv = 32, 33, 34, 35
sL, sKC, sT0, sT1, sT2, sT3 = 54, 55, 56, 57, 58, 59
sXO, sWO_, sMX, sMW, sWB, sKQ, sNON, sQB = 60, 61, 62, 63, 64, 65, 66, 67
sC640, sKVB = 68, 69
sOB, sONE1, sONE2, sSPIN = 36, 37, 38, 39
sSC = 40
sWOB = 42
sEX = 44
sPM = 46
sSL = 48
STAMP0 = 70

vLANE = 1
vX, vW, vWO = 10, 14, 19
vT = 24
vXR = 27
vKA, vKB, vV, vQA = 31, 32, 33, 34
cA, cKB, cV, cQB = 35, 36, 37, 38
vN = 39
vPOLL, vOM, vOL = 45, 46, 47
vTN, vTL = 48, 50
vOLD, vOUT = 52, 53
vNONL, vPF = 54, 55
ACC = 64
RING = 144
CVT = 176
KOWN = 216
MASK = 240
OACC, S0, PP, FIN = 64, 128, 160, 168
aV = 160
aKN = 0
aQ = 48

NEG_BIG = f32bits(-1e30)
SCALE = f32bits(20 ** -0.5 * math.log2(math.e))

def build(cfg):
    A = Asm()
    nstamp = [0]
    names = []
    def stamp(name):
        if not cfg.stamp: return
        i = nstamp[0]; nstamp[0] += 1; names.append(name)
        A(f"s_memtime {s(STAMP0 + 4 + 2*i, 2)}")

    A("s_cmp_ge_u32 s2, 256")
    A("s_cbranch_scc1 L_exit")
    if cfg.stamp:
        A(f"s_memrealtime {s(STAMP0,2)}")
    stamp("start")
    A("s_load_dwordx16 s[36:51], s[0:1], 0")
    A("s_load_dwordx2 s[52:53], s[0:1], 64")
    A("v_lshrrev_b32 v2, 6, v0")
    A(f"v_and_b32 {v(vLANE)}, 63, v0")
    A(f"v_readfirstlane_b32 {s(sWv)}, v2")
    A(f"s_bfe_u32 {s(sB)}, s2, 0x10002")
    A(f"s_and_b32 {s(sT0)}, s2, 3")
    A(f"s_lshl_b32 {s(sT0)}, {s(sT0)}, 2")
    A(f"s_lshr_b32 {s(sT1)}, s2, 6")
    A(f"s_add_u32 {s(sR)}, {s(sT0)}, {s(sT1)}")
    A(f"s_bfe_u32 {s(sC)}, s2, 0x30003")
    A(f"s_lshl_b32 {s(sL)}, {s(sB)}, 4")
    A(f"s_add_u32 {s(sL)}, {s(sL)}, {s(sR)}")
    A(f"s_lshl_b32 {s(sL)}, {s(sL)}, 3")
    A(f"s_add_u32 {s(sL)}, {s(sL)}, {s(sC)}")
    if cfg.stagger:
        A(f"s_mul_i32 {s(sT0)}, {s(sR)}, 5")
        A(f"s_lshr_b32 {s(sT0)}, {s(sT0)}, 1")
        A(f"s_lshr_b32 {s(sT1)}, {s(sR)}, 2")
        A(f"s_add_u32 {s(sT0)}, {s(sT0)}, {s(sT1)}")
        A(f"s_add_u32 {s(sT0)}, {s(sT0)}, {s(sC)}")
        A(f"s_mul_i32 {s(sT1)}, {s(sT0)}, 205")
        A(f"s_lshr_b32 {s(sT1)}, {s(sT1)}, 11")
        A(f"s_mul_i32 {s(sT1)}, {s(sT1)}, 10")
        A(f"s_sub_u32 {s(sKC)}, {s(sT0)}, {s(sT1)}")
    else:
        A(f"s_mov_b32 {s(sKC)}, 0")
    A(f"v_lshrrev_b32 v2, 3, {v(vLANE)}")
    A(f"v_lshrrev_b32 v3, 4, {v(vLANE)}")
    A(f"v_and_b32 v4, 7, {v(vLANE)}")
    A("v_xor_b32 v4, v4, v3")
    A("v_mul_u32_u24 v2, 1280, v2")
    A(f"s_lshl_b32 {s(sT0)}, {s(sR)}, 2")
    A(f"s_add_u32 {s(sT0)}, {s(sT0)}, {s(sWv)}")
    A(f"s_mul_i32 {s(sT0)}, {s(sT0)}, {32*1280}")
    A(f"v_add_u32 v2, {s(sT0)}, v2")
    A(f"v_lshl_add_u32 {v(vX)}, v4, 4, v2")
    A("v_xor_b32 v4, 4, v4")
    A(f"v_lshl_add_u32 {v(vX+1)}, v4, 4, v2")
    A(f"v_add_u32 {v(vX+1)}, {10240-1024}, {v(vX+1)}")
    A(f"v_add_u32 {v(vX+2)}, {20480-2048}, {v(vX)}")
    A(f"v_add_u32 {v(vX+3)}, {20480-2048}, {v(vX+1)}")
    A(f"s_lshl_b32 {s(sMX)}, {s(sWv)}, 12")
    A(f"s_mul_i32 {s(sMW)}, {s(sWv)}, 5120")
    A(f"s_and_b32 {s(sT0)}, {s(sWv)}, 1")
    A(f"s_lshr_b32 {s(sT1)}, {s(sWv)}, 1")
    A(f"s_mul_i32 {s(sQB)}, {s(sT0)}, {32*3840}")
    A(f"s_add_u32 {s(sKQ)}, {s(sKC)}, {s(sT1)}")
    A(f"s_cmp_ge_u32 {s(sKQ)}, 10")
    A(f"s_cselect_b32 {s(sKQ)}, 0, {s(sKQ)}")
    A(f"s_mul_i32 {s(sT0)}, {s(sT0)}, 1280")
    A(f"s_mul_i32 {s(sT1)}, {s(sT1)}, {32*3840}")
    A(f"s_add_u32 {s(sWB)}, {s(sT0)}, {s(sT1)}")
    A(f"s_add_u32 {s(sWB)}, {s(sWB)}, 1280")
    A(f"s_mul_i32 {s(sT3)}, {s(sC)}, 160")
    for p in range(5):
        comp = 1024 * p if p < 4 else 0
        A(f"v_add_u32 v2, {64*p}, {v(vLANE)}")
        A("v_mul_u32_u24 v3, 205, v2")
        A("v_lshrrev_b32 v3, 11, v3")
        A("v_mul_u32_u24 v4, 10, v3")
        A("v_sub_u32 v4, v2, v4")
        A(f"v_lshl_add_u32 v4, v4, 4, {s(sT3)}")
        A("v_and_b32 v5, 0x13, v3")
        A("v_and_b32 v6, 4, v3")
        A("v_lshl_or_b32 v5, v6, 1, v5")
        A("v_and_b32 v6, 8, v3")
        A("v_lshrrev_b32 v6, 1, v6")
        A("v_or_b32 v5, v5, v6")
        A("v_mul_u32_u24 v5, 3840, v5")
        A("v_mul_u32_u24 v3, 1280, v3")
        if comp:
            A(f"v_subrev_u32 v4, {comp}, v4")
        A(f"v_add_u32 {v(vW+p)}, v5, v4")
        A(f"v_add_u32 {v(vWO+p)}, v3, v4")
    A("s_waitcnt lgkmcnt(0)")
    A(f"s_cmp_eq_u32 {s(sB)}, 0")
    for d, x0, x1, n in ((SX, 36, 42, 2621440), (SW, 38, 44, 2457600), (SWO, 40, 46, 819200)):
        A(f"s_cselect_b32 {s(d)}, {s(x0)}, {s(x1)}")
        A(f"s_cselect_b32 {s(d+1)}, {s(x0+1)}, {s(x1+1)}")
        A(f"s_mov_b32 {s(d+2)}, {n}")
        A(f"s_mov_b32 {s(d+3)}, 0x00020000")
    for d, x0, n in ((SOUT, 48, 5242880), (SDBG, 50, 256), (SWS, 52, WS_SIZE)):
        A(f"s_mov_b32 {s(d)}, {s(x0)}")
        A(f"s_mov_b32 {s(d+1)}, {s(x0+1)}")
        A(f"s_mov_b32 {s(d+2)}, {n}")
        A(f"s_mov_b32 {s(d+3)}, 0x00020000")

    def kv_jobs(step):
        J = []
        xu, wu = X_UNIT[step % 3] * U, W_UNIT[step % 4] * U
        def j0():
            A(f"s_mul_i32 {s(sWO_)}, {s(sKC)}, {64*3840}")
            A(f"s_add_u32 m0, {s(sMW)}, {wu}")
            A(f"s_add_u32 {s(sWO_)}, {s(sWO_)}, {s(sWB)}")
            A.vmop(f"buffer_load_dwordx4 {v(vW)}, {s(SW,4)}, {s(sWO_)} offen lds", ("st", step))
        J.append(j0)
        for p in (1, 2, 3):
            J.append(lambda p=p: A.vmop(f"buffer_load_dwordx4 {v(vW+p)}, {s(SW,4)}, {s(sWO_)} offen offset:{1024*p} lds", ("st", step)))
        def j4():
            A(f"s_add_u32 m0, {s(sMW)}, {wu + 4096}")
            A(f"s_lshl_b32 {s(sXO)}, {s(sKC)}, 7")
            A.vmop(f"buffer_load_dwordx4 {v(vW+4)}, {s(SW,4)}, {s(sWO_)} offen lds", ("st", step))
        J.append(j4)
        def j5():
            A(f"s_add_u32 m0, {s(sMX)}, {xu}")
            A(f"s_add_u32 {s(sKC)}, {s(sKC)}, 1")
            A.vmop(f"buffer_load_dwordx4 {v(vX)}, {s(SX,4)}, {s(sXO)} offen lds", ("st", step))
        J.append(j5)
        def j6():
            A(f"s_cmp_eq_u32 {s(sKC)}, 10")
            A(f"s_cselect_b32 {s(sKC)}, 0, {s(sKC)}")
            A.vmop(f"buffer_load_dwordx4 {v(vX+1)}, {s(SX,4)}, {s(sXO)} offen offset:1024 lds", ("st", step))
        J.append(j6)
        for p in (2, 3):
            J.append(lambda p=p: A.vmop(f"buffer_load_dwordx4 {v(vX+p)}, {s(SX,4)}, {s(sXO)} offen offset:{1024*p} lds", ("st", step)))
        return J
    def q_jobs(q):
        J = []
        wu = Q_UNIT[q] * U
        def j0():
            A(f"s_mul_i32 {s(sWO_)}, {s(sKQ)}, {64*3840}")
            A(f"s_add_u32 m0, {s(sMW)}, {wu}")
            A(f"s_add_u32 {s(sWO_)}, {s(sWO_)}, {s(sQB)}")
            A.vmop(f"buffer_load_dwordx4 {v(vW)}, {s(SW,4)}, {s(sWO_)} offen lds", ("st", 10 + q))
        J.append(j0)
        def j1():
            A(f"s_add_u32 {s(sKQ)}, {s(sKQ)}, 2")
            A(f"s_sub_u32 {s(sT0)}, {s(sKQ)}, 10")
            A.vmop(f"buffer_load_dwordx4 {v(vW+1)}, {s(SW,4)}, {s(sWO_)} offen offset:1024 lds", ("st", 10 + q))
        J.append(j1)
        def j2():
            A(f"s_cmp_ge_u32 {s(sKQ)}, 10")
            A(f"s_cselect_b32 {s(sKQ)}, {s(sT0)}, {s(sKQ)}")
            A.vmop(f"buffer_load_dwordx4 {v(vW+2)}, {s(SW,4)}, {s(sWO_)} offen offset:2048 lds", ("st", 10 + q))
        J.append(j2)
        J.append(lambda: A.vmop(f"buffer_load_dwordx4 {v(vW+3)}, {s(SW,4)}, {s(sWO_)} offen offset:3072 lds", ("st", 10 + q)))
        def j4():
            A(f"s_add_u32 m0, {s(sMW)}, {wu + 4096}")
            A("s_nop 0")
            A.vmop(f"buffer_load_dwordx4 {v(vW+4)}, {s(SW,4)}, {s(sWO_)} offen lds", ("st", 10 + q))
        J.append(j4)
        return J
    def wo_jobs(j):
        J = []
        wu = j * U
        def j0():
            A(f"s_add_u32 m0, {s(sMW)}, {wu}")
            A(f"s_add_u32 {s(sWO_)}, {s(sWOB)}, {j*128*1280}")
            A.vmop(f"buffer_load_dwordx4 {v(vWO)}, {s(SWO,4)}, {s(sWO_)} offen lds", "wo")
        J.append(j0)
        for p in (1, 2, 3):
            J.append(lambda p=p: A.vmop(f"buffer_load_dwordx4 {v(vWO+p)}, {s(SWO,4)}, {s(sWO_)} offen offset:{1024*p} lds", "wo"))
        def j4():
            A(f"s_add_u32 m0, {s(sMW)}, {wu + 4096}")
            A("s_nop 0")
            A.vmop(f"buffer_load_dwordx4 {v(vWO+4)}, {s(SWO,4)}, {s(sWO_)} offen lds", "wo")
        J.append(j4)
        return J

    for j in kv_jobs(0): j()
    A("s_getpc_b64 s[4:5]")
    A.label("L_pc")
    A(f"s_lshr_b32 {s(sT0)}, s2, 3")
    A(f"s_lshl_b32 {s(sT0)}, {s(sT0)}, 2")
    A(f"s_add_u32 {s(sT0)}, {s(sT0)}, {s(sWv)}")
    A(f"s_lshl_b32 {s(sT0)}, {s(sT0)}, 9")
    A(f"v_lshl_add_u32 v2, {v(vLANE)}, 7, {s(sT0)}")
    A("v_min_u32 v2, L_exit-L_pc, v2")
    A("s_mov_b64 exec, 15")
    A.vmop(f"global_load_dword {v(vPF)}, v2, s[4:5]", "pf")
    A("s_mov_b64 exec, -1")
    for j in kv_jobs(1): j()

    A(f"s_or_b32 {s(sT0)}, s2, {s(sWv)}")
    A(f"s_cmp_eq_u32 {s(sT0)}, 0")
    A("s_cbranch_scc0 L_nononce")
    A(f"s_add_u32 s4, s52, {WS_EPOCH}")
    A("s_addc_u32 s5, s53, 0")
    A(f"s_load_dword {s(sT0)}, s[4:5], 0")
    A("s_waitcnt lgkmcnt(0)")
    A(f"s_mul_i32 {s(sT0)}, {s(sT0)}, 0x9E3779B5")
    A(f"s_add_u32 {s(sT0)}, {s(sT0)}, 0x7F4A7C15")
    A(f"s_cmp_eq_u32 {s(sT0)}, 0")
    A(f"s_cselect_b32 {s(sT0)}, 0x2545F491, {s(sT0)}")
    A(f"v_mov_b32 v2, {s(sT0)}")
    A(f"v_mov_b32 v3, {WS_EPOCH}")
    A("v_mov_b32 v4, 0")
    A("s_mov_b64 exec, 1")
    A(f"buffer_store_dword v2, v4, {s(SDBG,4)}, 0 offen sc1")
    A(f"buffer_store_dword v2, v3, {s(SWS,4)}, 0 offen sc1")
    A("s_mov_b64 exec, -1")
    A("s_waitcnt vmcnt(0)")
    A.label("L_nononce")

    g, t = 2, 3
    A(f"v_lshrrev_b32 v{g}, 4, {v(vLANE)}")
    A(f"v_and_b32 v{t}, 15, {v(vLANE)}")
    A(f"v_lshrrev_b32 v4, 5, {v(vLANE)}")
    A(f"v_bfe_u32 v5, {v(vLANE)}, 4, 1")
    A(f"v_bfe_u32 v6, {v(vLANE)}, 2, 2")
    A(f"v_and_b32 v7, 3, {v(vLANE)}")
    A("v_mul_u32_u24 v7, 40, v7")
    A("v_lshl_add_u32 v8, v5, 2, v6")
    A("v_lshl_add_u32 v9, v4, 4, v8")
    A("v_mul_u32_u24 v9, 160, v9")
    A(f"v_add_u32 {v(vT)}, v9, v7")
    A(f"v_add_u32 {v(vT+1)}, {3*U}, {v(vT)}")
    A(f"v_add_u32 {v(vT+2)}, {6*U}, {v(vT)}")
    A("v_mul_u32_u24 v9, 20, v4")
    A("v_add_u32 v9, v9, v8")
    A("v_mul_u32_u24 v9, 160, v9")
    A(f"v_add_u32 {v(vTN)}, v9, v7")
    A(f"v_add_u32 {v(vTN+1)}, 51200, {v(vTN)}")
    A("v_lshl_add_u32 v9, v4, 2, v5")
    A("v_mul_u32_u24 v9, 20, v9")
    A("v_add_u32 v9, v9, v6")
    A("v_mul_u32_u24 v9, 160, v9")
    A(f"v_add_u32 {v(vTL)}, v9, v7")
    A(f"v_add_u32 {v(vTL+1)}, 51200, {v(vTL)}")
    A(f"v_lshrrev_b32 v8, 1, v{t}")
    A(f"v_xor_b32 v8, v8, v{g}")
    A(f"v_lshl_add_u32 v9, v{t}, 7, {s(sMX)}")
    A(f"v_lshl_add_u32 {v(vXR)}, v8, 4, v9")
    A(f"v_add_u32 {v(vXR+1)}, {5*U}, {v(vXR)}")
    A(f"v_xor_b32 {v(vXR+2)}, 64, {v(vXR)}")
    A(f"v_xor_b32 {v(vXR+3)}, 64, {v(vXR+1)}")
    A(f"s_mul_i32 {s(sT0)}, {s(sWv)}, 1280")
    A(f"v_mul_u32_u24 v8, 5120, v{g}")
    A(f"v_add_u32 v8, {s(sT0)}, v8")
    A(f"v_lshl_add_u32 {v(vQA)}, v{t}, 4, v8")
    A(f"v_add_u32 {v(vKB)}, 1024, {v(vQA)}")
    A(f"v_and_b32 v9, 8, v{t}")
    A(f"v_lshl_add_u32 {v(vKA)}, v9, 4, {v(vQA)}")
    A("v_mul_u32_u24 v8, 5120, v6")
    A(f"v_add_u32 v8, {s(sT0)}, v8")
    A(f"v_mul_u32_u24 v9, 20, v{g}")
    A(f"v_and_b32 v7, 3, {v(vLANE)}")
    A("v_add_u32 v9, v9, v7")
    A(f"v_lshl_add_u32 {v(vV)}, v9, 4, v8")
    A(f"v_lshl_add_u32 {v(cA)}, {v(vLANE)}, 4, {s(sMW)}")
    A(f"v_and_b32 v7, 7, {v(vLANE)}")
    A("v_lshl_add_u32 v7, v5, 3, v7")
    A(f"v_and_b32 v8, 8, {v(vLANE)}")
    A("v_lshl_add_u32 v7, v7, 4, v8")
    A(f"s_add_u32 {s(sT1)}, {s(sMW)}, 1024")
    A(f"v_add_u32 {v(cKB)}, {s(sT1)}, v7")
    A(f"v_lshlrev_b32 v7, 3, v5")
    A(f"v_lshl_add_u32 v7, v{t}, 4, v7")
    A(f"v_add_u32 {v(cQB)}, {s(sT1)}, v7")
    A(f"v_and_b32 v7, 31, {v(vLANE)}")
    A("v_mul_u32_u24 v8, 20, v4")
    A("v_add_u32 v8, v8, v7")
    A(f"v_lshl_add_u32 {v(cV)}, v8, 4, {s(sMW)}")
    A(f"s_mul_i32 {s(sKVB)}, {s(sL)}, 40960")
    for n in (1, 2):
        A(f"s_sub_u32 {s(sT0)}, {s(sKVB)}, {n*8*40960}")
        A(f"s_cmp_ge_u32 {s(sR)}, {n}")
        A(f"s_cselect_b32 {s(sT0)}, {s(sT0)}, 0x40000000")
        A(f"s_cselect_b32 {s(sONE1+n-1)}, 0x3F803F80, 0")
        A(f"s_add_u32 {s(sT1)}, {s(sT0)}, 20480")
        A(f"v_add_u32 {v(vN+3*(n-1))}, {s(sT0)}, {v(cA)}")
        A(f"v_add_u32 {v(vN+3*(n-1)+1)}, {s(sT0)}, {v(cKB)}")
        A(f"v_add_u32 {v(vN+3*(n-1)+2)}, {s(sT1)}, {v(cV)}")
    A(f"s_lshr_b32 {s(sT0)}, {s(sL)}, 3")
    A(f"s_mul_i32 {s(sOB)}, {s(sT0)}, 163840")
    A(f"s_add_u32 {s(sOB)}, {s(sOB)}, {WS_O}")
    A(f"s_lshr_b32 {s(sT0)}, {s(sC)}, 1")
    A(f"s_and_b32 {s(sT1)}, {s(sC)}, 1")
    A(f"s_mul_i32 {s(sT0)}, {s(sT0)}, 20")
    A(f"s_lshl_b32 {s(sT2)}, {s(sT1)}, 2")
    A(f"s_add_u32 {s(sT2)}, {s(sT2)}, {s(sWv)}")
    A(f"s_lshl_b32 {s(sT2)}, {s(sT2)}, 1")
    A(f"s_add_u32 {s(sT2)}, {s(sT2)}, {s(sT0)}")
    A(f"s_lshl_b32 {s(sT2)}, {s(sT2)}, 8")
    A("v_mul_u32_u24 v8, 20480, v5")
    A(f"v_lshl_add_u32 v8, v{t}, 4, v8")
    A("v_lshl_add_u32 v9, v4, 8, v8")
    A(f"v_add_u32 {v(vOM)}, {s(sT2)}, v9")
    A(f"s_lshl_b32 {s(sT1)}, {s(sT1)}, 1")
    A(f"s_add_u32 {s(sT0)}, {s(sT0)}, {s(sT1)}")
    A(f"s_and_b32 {s(sT1)}, {s(sWv)}, 1")
    A(f"s_add_u32 {s(sT0)}, {s(sT0)}, {s(sT1)}")
    A(f"s_add_u32 {s(sT0)}, {s(sT0)}, 16")
    A(f"s_lshl_b32 {s(sT0)}, {s(sT0)}, 8")
    A(f"s_lshr_b32 {s(sT1)}, {s(sWv)}, 1")
    A(f"s_lshl_b32 {s(sT1)}, {s(sT1)}, 3")
    A(f"s_add_u32 {s(sT0)}, {s(sT0)}, {s(sT1)}")
    A(f"v_add_u32 {v(vOL)}, {s(sT0)}, v8")
    A(f"s_mul_i32 {s(sT0)}, {s(sWv)}, 40960")
    A(f"s_add_u32 {s(sT0)}, {s(sT0)}, {s(sOB)}")
    A(f"v_lshl_add_u32 {v(vOLD)}, {v(vLANE)}, 4, {s(sT0)}")
    A(f"s_lshl_b32 {s(sT0)}, {s(sR)}, 2")
    A(f"s_add_u32 {s(sT0)}, {s(sT0)}, {s(sWv)}")
    A(f"s_mul_i32 {s(sT0)}, {s(sT0)}, {32*2560}")
    A(f"s_mul_i32 {s(sT1)}, {s(sB)}, 1280")
    A(f"s_add_u32 {s(sT0)}, {s(sT0)}, {s(sT1)}")
    A(f"s_add_u32 {s(sT0)}, {s(sT0)}, {s(sT3)}")
    A(f"v_mul_u32_u24 v8, 2560, v{t}")
    A(f"v_mul_u32_u24 v9, 40, v{g}")
    A(f"v_add3_u32 {v(vOUT)}, v8, v9, {s(sT0)}")
    A(f"s_mov_b32 {s(sC640)}, 640")
    A(f"s_mov_b32 {s(sSC)}, {SCALE}")
    A(f"s_mov_b32 {s(sSC+1)}, {SCALE}")
    A(f"s_mul_i32 {s(sWOB)}, {s(sWv)}, {32*1280}")
    A(f"s_mov_b32 {s(sEX)}, 0x000FFFFF")
    A(f"s_mov_b32 {s(sEX+1)}, 0x000FFFFF")
    A("v_lshlrev_b32 v8, 2, v4")
    A("v_sub_u32 v7, v7, v8")
    A(f"v_mov_b32 v8, {NEG_BIG}")
    for r_ in range(16):
        i_, j_ = r_ >> 2, r_ & 3
        kap = 16 * (i_ & 1) + 8 * (i_ >> 1) + j_
        A(f"v_cmp_gt_i32 vcc, {kap}, v7")
        A("s_nop 1")
        A(f"v_cndmask_b32 {v(MASK+r_)}, 0, v8, vcc")
    A(f"s_mov_b32 {s(sT0)}, 0x3F803F80")
    for tl in range(12):
        src = sT0 if tl < 4 else (sONE1 if tl < 8 else sONE2)
        for k in range(8):
            A(f"v_accvgpr_write_b32 {a(aV + tl*8 + k)}, {s(src)}")

    D, R = cfg.D, cfg.R
    NS = 300
    def slot_info(n):
        st, i = divmod(n, 20)
        if st < 10:
            ks, tile = divmod(i, 10)
            sec, ti = divmod(tile, 5)
            off = W_UNIT[st % 4] * U + (2 * ks + sec) * 5120 + 8 * ti
            xk = st * 2 + ks
            acc = ACC + (sec * 5 + ti) * 8
            return st, off, xk, acc, sec == 1, xk == 0
        q = st - 10
        kk, ti = divmod(i, 5)
        off = Q_UNIT[q] * U + kk * 5120 + 8 * ti
        xk = q * 4 + kk
        return st, off, xk, ACC + ti * 8, False, xk == 0
    def tr_read(n, s_):
        st, off, *_ = slot_info(n)
        off += s_ * 1280
        base = off // (3 * U)
        reg = RING + (n % R) * 4 + 2 * s_
        A.dsop(f"ds_read_b64_tr_b16 {v(reg,2)}, {v(vT+base)} offset:{off - base*3*U}", ("w", n))
    def x_read(st, ks):
        u = X_UNIT[st % 3]
        hi = 1 if u == 5 else 0
        for rt in range(2):
            off = (0 if hi else u * U) + rt * 2048
            A.dsop(f"ds_read_b128 {a((st*2+ks)*8 + rt*4, 4)}, {v(vXR + 2*ks + hi)} offset:{off}", ("x", st * 2 + ks))
    def barrier_for(st):
        A.wait(vm=("st", st))
        A("s_barrier")

    jobs = []
    extra = {}
    def at(n, f): extra.setdefault(n, []).append(f)

    barrier_for(0)
    stamp("B0")
    x_read(0, 0)
    for n in range(D):
        tr_read(n, 0); tr_read(n, 1)
    x_read(0, 1)

    def kv_epilogue():
        stamp("kvdone")
        A("s_nop 7")
        kacc = lambda i, rt: ACC + i * 8 + rt * 4
        vacc = lambda i, rt: ACC + (5 + i) * 8 + rt * 4
        def cvt2(dst, src):
            A(f"v_cvt_pk_bf16_f32 {v(dst)}, {v(src)}, {v(src+1)}")
            A(f"v_cvt_pk_bf16_f32 {v(dst+1)}, {v(src+2)}, {v(src+3)}")
        groups = []
        for rt in range(2):
            for h in range(2):
                groups.append(([kacc(2*h, rt), kacc(2*h+1, rt)], vKA, h * 512 + rt * 128, 0))
        groups.append(([kacc(4, 0), kacc(4, 1)], vKB, 0, 0))
        for i in range(5):
            groups.append(([vacc(i, 0), vacc(i, 1)], vV, 64 * i, 1))
        A(f"s_add_u32 {s(sT1)}, {s(sKVB)}, 20480")
        for gi, (srcs, adr, off, isv) in enumerate(groups):
            d = CVT + gi * 4
            cvt2(d, srcs[0]); cvt2(d + 2, srcs[1])
            A.vmop(f"buffer_store_dwordx4 {v(d,4)}, {v(adr)}, {s(SWS,4)}, {s(sT1 if isv else sKVB)} offen offset:{off} sc1", "kvst")
        for gi, (srcs, adr, off, isv) in enumerate(groups):
            d = CVT + gi * 4
            A.dsop(f"ds_write_b128 {v(adr)}, {v(d,4)} offset:{(VST_UNIT if isv else KST_UNIT)*U + off}", "kvw")
        stamp("kvepi")
    def own_kv_reads():
        J = []
        for kt in range(4):
            J.append(lambda kt=kt: A.dsop(f"ds_read_b128 {v(KOWN+kt*6,4)}, {v(cA)} offset:{KST_UNIT*U + kt*1280}", "own"))
            J.append(lambda kt=kt: A.dsop(f"ds_read_b64 {v(KOWN+kt*6+4,2)}, {v(cKB)} offset:{KST_UNIT*U + kt*1280}", "own"))
            def vr(kt=kt):
                A(f"s_mov_b64 exec, {s(sEX,2)}")
                for m in range(2):
                    A.dsop(f"ds_read_b128 {a(aV+kt*8+m*4,4)}, {v(cV)} offset:{VST_UNIT*U + kt*1280 + m*640}", "own")
                A("s_mov_b64 exec, -1")
            J.append(vr)
        return J

    for n in range(NS):
        st, off, xk, acc, isv, first = slot_info(n)
        i = n % 20
        if i == 0:
            if st <= 7: jobs += kv_jobs(st + 2)
            if st == 8: jobs += q_jobs(0) + q_jobs(1) + q_jobs(2)
            if st == 9: jobs += q_jobs(3)
            if st == 5:
                def nl():
                    A("v_mov_b32 v2, 0")
                    A.vmop(f"buffer_load_dword {v(vNONL)}, v2, {s(SDBG,4)}, 0 offen sc1", "non")
                jobs.append(nl)
            if st == 10:
                while jobs: jobs.pop(0)()
                kv_epilogue()
        nr = n + D
        newstep = nr < NS and nr % 20 == 0
        if newstep:
            nst = nr // 20
            if nst <= 10:
                while jobs: jobs.pop(0)()
            if nst == 11: A.wait(lg="kvw")
            if nst == 12: A.wait(lg="own")
            barrier_for(nst)
            if nst < 10: x_read(nst, 0)
            if nst == 10: jobs += q_jobs(4)
            if nst == 11: jobs += own_kv_reads() + wo_jobs(2)
            if nst == 12: jobs += wo_jobs(0) + wo_jobs(1) + wo_jobs(3)
            if nst == 13: jobs += wo_jobs(4)
        if nr < NS and nr % 20 == 3 and nr // 20 < 10 and nr >= 20:
            x_read(nr // 20, 1)
        A.wait(lg=[("w", n), ("x", xk)])
        wf = v(RING + (n % R) * 4, 4)
        for rt in range(2):
            xf = a(xk * 8 + rt * 4, 4)
            d = v(acc + rt * 4, 4)
            opa, opb = (xf, wf) if isv else (wf, xf)
            A(f"v_mfma_f32_16x16x32_bf16 {d}, {opa}, {opb}, {'0' if first else d}")
            if nr < NS: tr_read(nr, rt)
        if jobs:
            need = len(jobs)
            left = (20 - D - 1 - i) if i < 20 - D else 20
            if st >= 10 or need >= left or i % 3 != 2:
                jobs.pop(0)()
    while jobs: jobs.pop(0)()
    stamp("qdone")

    A("s_nop 4")
    for qt in range(4):
        for k in range(2):
            A(f"v_accvgpr_write_b32 {a(aQ+qt*6+4+k)}, 0")
    qacc = lambda i, rt: ACC + i * 8 + rt * 4
    for k in range(20):
        A(f"v_pk_mul_f32 {v(ACC+2*k,2)}, {v(ACC+2*k,2)}, {s(sSC,2)}")
    groups = []
    for rt in range(2):
        for h in range(2):
            groups.append(([qacc(2*h, rt), qacc(2*h+1, rt)], vQA, h * 512 + rt * 256))
    groups.append(([qacc(4, 0), qacc(4, 1)], vKB, 0))
    A(f"v_add_u32 v2, {QST_UNIT*U}, {v(vQA)}")
    A(f"v_add_u32 v3, {QST_UNIT*U}, {v(vKB)}")
    A(f"v_add_u32 {v(cQB)}, {QST_UNIT*U}, {v(cQB)}")
    A(f"v_add_u32 {v(vQA)}, {QST_UNIT*U}, {v(cA)}")
    for gi, (srcs, adr, off) in enumerate(groups):
        d = CVT + gi * 4
        for k, src in enumerate(srcs):
            A(f"v_cvt_pk_bf16_f32 {v(d+2*k)}, {v(src)}, {v(src+1)}")
            A(f"v_cvt_pk_bf16_f32 {v(d+2*k+1)}, {v(src+2)}, {v(src+3)}")
        A.dsop(f"ds_write_b128 {'v2' if adr == vQA else 'v3'}, {v(d,4)} offset:{off}", "qw")
    A.wait(vm="non")
    A(f"v_readfirstlane_b32 {s(sNON)}, {v(vNONL)}")
    A(f"s_mov_b32 {s(sSPIN)}, 0")
    A.label("L_nonce_chk")
    A(f"s_cmp_lg_u32 {s(sNON)}, 0")
    A("s_cbranch_scc1 L_nonce_ok")
    A("v_mov_b32 v4, 0")
    A(f"buffer_load_dword {v(vNONL)}, v4, {s(SDBG,4)}, 0 offen sc1")
    A("s_waitcnt vmcnt(0)")
    A(f"v_readfirstlane_b32 {s(sNON)}, {v(vNONL)}")
    A(f"s_add_u32 {s(sSPIN)}, {s(sSPIN)}, 1")
    A(f"s_cmp_lt_u32 {s(sSPIN)}, {cfg.spin_max}")
    A("s_cbranch_scc1 L_nonce_chk")
    A.label("L_nonce_ok")
    A(f"v_mov_b32 {v(vNONL)}, {s(sNON)}")
    A(f"s_lshl_b32 {s(sT0)}, {s(sL)}, 7")
    A(f"s_add_u32 {s(sT0)}, {s(sT0)}, {WS_FLAG}")
    A(f"v_mov_b32 v4, {s(sT0)}")
    A.wait(vm="kvst", lg="qw")
    A("s_barrier")
    stamp("kvdrain")
    def flag_store(vaddr):
        lab = A.newlabel("L_noflag")
        A(f"s_cmp_eq_u32 {s(sWv)}, 0")
        A(f"s_cbranch_scc0 {lab}")
        A("s_mov_b64 exec, 1")
        A(f"buffer_store_dword {v(vNONL)}, {vaddr}, {s(SWS,4)}, 0 offen sc1")
        A("s_mov_b64 exec, -1")
        A.label(lab)
    flag_store("v4")
    for qt in range(4):
        A.dsop(f"ds_read_b128 {a(aQ+qt*6,4)}, {v(vQA)} offset:{qt*1280}", ("q", qt))
    A("s_mov_b32 exec_hi, 0")
    for qt in range(4):
        A.dsop(f"ds_read_b64 {a(aQ+qt*6+4,2)}, {v(cQB)} offset:{qt*1280}", ("q", qt))
    A("s_mov_b64 exec, -1")
    A(f"v_lshlrev_b32 v5, 10, {v(vLANE)}")
    A("v_add_u32 v5, 1024, v5")
    A(f"v_sub_u32 {v(vPOLL)}, v4, v5")
    A(f"s_min_u32 {s(sT0)}, {s(sR)}, 2")
    A(f"s_bfm_b32 {s(sPM)}, {s(sT0)}, 0")
    A(f"s_mov_b32 {s(sPM+1)}, 0")

    def poll(vaddr, name):
        top, done = A.newlabel("L_poll"), A.newlabel("L_polldone")
        A(f"s_cmp_eq_u32 {s(sPM)}, 0")
        A(f"s_cbranch_scc1 {done}")
        A(f"s_mov_b32 {s(sSPIN)}, 0")
        A(f"s_mov_b64 exec, {s(sPM,2)}")
        A.label(top)
        A(f"buffer_load_dword v5, {vaddr}, {s(SWS,4)}, 0 offen sc1")
        A(f"s_add_u32 {s(sSPIN)}, {s(sSPIN)}, 1")
        A("s_waitcnt vmcnt(0)")
        A(f"v_cmp_ne_u32 vcc, {s(sNON)}, v5")
        A(f"s_cmp_ge_u32 {s(sSPIN)}, {cfg.spin_max}")
        A(f"s_cbranch_scc1 {done}")
        A(f"s_cbranch_vccnz {top}")
        A.label(done)
        A("s_mov_b64 exec, -1")
    def kfrag(tile):
        if tile < 4: return v(KOWN + tile * 6, 4), v(KOWN + tile * 6 + 4, 2)
        return a(aKN + (tile - 4) * 6, 4), a(aKN + (tile - 4) * 6 + 4, 2)
    def neighbour_loads():
        order = [7, 6, 5, 4, 11, 10, 9, 8]
        for tile in order:
            n, kt = divmod(tile - 4, 4)
            ka, kb = kfrag(tile)
            A.vmop(f"buffer_load_dwordx4 {ka}, {v(vN+3*n)}, {s(SWS,4)}, 0 offen offset:{kt*1280} sc1", ("k", tile))
            A.vmop(f"buffer_load_dwordx2 {kb}, {v(vN+3*n+1)}, {s(SWS,4)}, 0 offen offset:{kt*1280} sc1", ("k", tile))
            A(f"s_mov_b64 exec, {s(sEX,2)}")
            A.vmop(f"buffer_load_dwordx4 {a(aV+tile*8,4)}, {v(vN+3*n+2)}, {s(SWS,4)}, 0 offen offset:{kt*1280} sc1", ("v", tile))
            A.vmop(f"buffer_load_dwordx4 {a(aV+tile*8+4,4)}, {v(vN+3*n+2)}, {s(SWS,4)}, {s(sC640)} offen offset:{kt*1280} sc1", ("v", tile))
            A("s_mov_b64 exec, -1")
    blocks = []
    for qt in range(4):
        for kt in range(qt + 1):
            blocks.append((qt, kt, kt == qt))
    NOWN = len(blocks)
    for tile in (7, 6, 5, 4):
        for qt in range(4): blocks.append((qt, tile, False))
    for tile in (11, 10, 9, 8):
        kt = tile - 8
        for qt in range(kt + 1): blocks.append((qt, tile, qt == kt))
    NB = len(blocks)
    assert NB == 36
    started = set()
    def s_mfma(n, part):
        qt, tile, masked = blocks[n]
        sb = v(S0 + (n & 1) * 16, 16)
        ka, kb = kfrag(tile)
        if part == 0:
            A.wait(vm=("k", tile), lg=("q", qt))
            A(f"v_mfma_f32_32x32x16_bf16 {sb}, {ka}, {a(aQ+qt*6,4)}, {v(MASK,16) if masked else '0'}")
        else:
            A(f"v_mfma_f32_32x32x8_bf16 {sb}, {kb}, {a(aQ+qt*6+4,2)}, {sb}")
    def pv_mfma(n, m):
        qt, tile, masked = blocks[n]
        o = v(OACC + qt * 16, 16)
        if m == 0: A.wait(vm=("v", tile))
        cin = o if qt in started else "0"
        started.add(qt)
        A(f"v_mfma_f32_32x32x16_bf16 {o}, {a(aV+tile*8+m*4,4)}, {v(PP+m*4,4)}, {cin}")
    def valu_group(n, gq):
        sb = S0 + (n & 1) * 16 + gq * 4
        for k in range(4): A(f"v_exp_f32 {v(sb+k)}, {v(sb+k)}")
        A(f"v_cvt_pk_bf16_f32 {v(PP+gq*2)}, {v(sb)}, {v(sb+1)}")
        A(f"v_cvt_pk_bf16_f32 {v(PP+gq*2+1)}, {v(sb+2)}, {v(sb+3)}")
    s_mfma(0, 0); s_mfma(0, 1)
    A("s_nop 11")
    for n in range(NB):
        if n + 1 == NOWN:
            stamp("own")
            poll(v(vPOLL), "kv")
            A.vm = []
            stamp("kvflag")
            neighbour_loads()
        if n == NOWN + 2:
            for r_ in range(16):
                A(f"v_xor_b32 {v(MASK+r_)}, {NEG_BIG}, {v(MASK+r_)}")
        if n + 1 < NB: s_mfma(n + 1, 0)
        valu_group(n, 0)
        if n + 1 < NB: s_mfma(n + 1, 1)
        valu_group(n, 1)
        if n > 0: pv_mfma(n - 1, 1)
        valu_group(n, 2)
        pv_mfma(n, 0)
        valu_group(n, 3)
    A("s_nop 1")
    pv_mfma(NB - 1, 1)
    stamp("attn")
    A(f"s_mov_b32 {s(sT0)}, {f32bits(2.0**-30)}")
    A(f"s_mov_b32 {s(sT1)}, {f32bits(2.0**30)}")
    A("s_nop 9")
    A(f"v_min3_f32 v2, {v(OACC+12)}, {v(OACC+28)}, {v(OACC+44)}")
    A(f"v_min_f32 v2, v2, {v(OACC+60)}")
    A(f"v_add_f32 v3, {v(OACC+12)}, {v(OACC+28)}")
    A(f"v_add_f32 v4, {v(OACC+44)}, {v(OACC+60)}")
    A("v_add_f32 v3, v3, v4")
    A(f"v_cmp_le_f32 vcc, {s(sT0)}, v2")
    A(f"v_cmp_ge_f32 {s(sT2,2)}, {s(sT1)}, v3")
    A(f"s_and_b64 vcc, vcc, {s(sT2,2)}")
    A("s_cmp_eq_u64 vcc, -1")
    if cfg.force_slow: A("s_branch L_slow")
    A("s_cbranch_scc0 L_slow")
    def finalize(o, sbase_expr):
        A(f"v_rcp_f32 {v(FIN)}, {v(o+12)}")
        A("s_nop 0")
        for k in range(6):
            A(f"v_pk_mul_f32 {v(o+2*k,2)}, {v(o+2*k,2)}, {v(FIN,2)} op_sel_hi:[1,0]")
        for k in range(6):
            A(f"v_cvt_pk_bf16_f32 {v(o+k)}, {v(o+2*k)}, {v(o+2*k+1)}")
        A.vmop(f"buffer_store_dwordx4 {v(o,4)}, {v(vOM)}, {s(SWS,4)}, {sbase_expr} offen sc1", "ost")
        A("s_mov_b32 exec_hi, 0")
        A.vmop(f"buffer_store_dwordx2 {v(o+4,2)}, {v(vOL)}, {s(SWS,4)}, {sbase_expr} offen sc1", "ost")
        A("s_mov_b64 exec, -1")
    for qt in range(4):
        A(f"s_add_u32 {s(sT0)}, {s(sOB)}, {qt*40960}")
        finalize(OACC + qt * 16, s(sT0))
    A.label("L_attn_done")
    stamp("fin")
    A(f"s_lshl_b32 {s(sT0)}, {s(sL)}, 7")
    A(f"s_add_u32 {s(sT0)}, {s(sT0)}, {WS_FLAG_O}")
    A(f"v_mov_b32 v4, {s(sT0)}")
    A(f"s_and_b32 {s(sT0)}, {s(sT0)}, 0xfffffc00")
    A(f"v_lshl_add_u32 {v(vPOLL)}, {v(vLANE)}, 7, {s(sT0)}")
    A(f"s_mov_b32 {s(sPM)}, 0xff")
    A.wait(vm0=True)
    A("s_barrier")
    stamp("odrain")
    flag_store("v4")

    def p3_info(n):
        u, ti = divmod(n, 5)
        e, m = divmod(u, 5)
        if m < 4: base, row0, sstep = vTN, 160 * e + 40 * m, 8
        else: base, row0, sstep = vTL, 160 * e + 16, 40
        return u, ti, base, row0, sstep
    def p3_read(n, s_):
        u, ti, base, row0, sstep = p3_info(n)
        off = (row0 + s_ * sstep) * 160 + 8 * ti
        hi = 1 if off >= 51200 else 0
        reg = RING + (n % R) * 4 + 2 * s_
        A.dsop(f"ds_read_b64_tr_b16 {v(reg,2)}, {v(base+hi)} offset:{off - hi*51200}", ("w3", n))
    for n in range(D):
        p3_read(n, 0); p3_read(n, 1)
    poll(v(vPOLL), "o")
    stamp("oflag")
    for u in range(20):
        for rt in range(2):
            if u % 4 == 0:
                A(f"s_mov_b32 {s(sT0+rt)}, {rt*20480 + u*1024}")
            A.vmop(f"buffer_load_dwordx4 {a(u*8+rt*4,4)}, {v(vOLD)}, {s(SWS,4)}, {s(sT0+rt)} offen offset:{(u%4)*1024} sc1", ("o", u))
    for n in range(100):
        u, ti, *_ = p3_info(n)
        A.wait(vm=("o", u), lg=("w3", n))
        wf = v(RING + (n % R) * 4, 4)
        for rt in range(2):
            d = v(ACC + ti * 8 + rt * 4, 4)
            A(f"v_mfma_f32_16x16x32_bf16 {d}, {wf}, {a(u*8+rt*4,4)}, {'0' if u == 0 else d}")
            if n + D < 100: p3_read(n + D, rt)
    stamp("p3")
    A(f"s_mov_b32 {s(sT0)}, 40960")
    A("s_nop 6")
    for rt in range(2):
        d = CVT + rt * 12
        for i in range(5):
            src = ACC + i * 8 + rt * 4
            A(f"v_cvt_pk_bf16_f32 {v(d+2*i)}, {v(src)}, {v(src+1)}")
            A(f"v_cvt_pk_bf16_f32 {v(d+2*i+1)}, {v(src+2)}, {v(src+3)}")
        so = s(sT0) if rt else "0"
        A(f"buffer_store_dwordx4 {v(d,4)}, {v(vOUT)}, {s(SOUT,4)}, {so} offen")
        A(f"buffer_store_dwordx4 {v(d+4,4)}, {v(vOUT)}, {s(SOUT,4)}, {so} offen offset:16")
        A(f"buffer_store_dwordx2 {v(d+8,2)}, {v(vOUT)}, {s(SOUT,4)}, {so} offen offset:32")
    if cfg.stamp:
        A("s_waitcnt vmcnt(0)")
        stamp("end")
        A(f"s_memrealtime {s(STAMP0+2,2)}")
        A("s_waitcnt lgkmcnt(0)")
        A(f"s_lshl_b32 {s(sT0)}, {s(sL)}, 2")
        A(f"s_add_u32 {s(sT0)}, {s(sT0)}, {s(sWv)}")
        A(f"s_lshl_b32 {s(sT0)}, {s(sT0)}, 7")
        A(f"s_add_u32 {s(sT0)}, {s(sT0)}, {WS_STAMP}")
        A(f"v_mov_b32 v2, {s(sT0)}")
        A("s_mov_b64 exec, 1")
        for k in range(2 + nstamp[0]):
            A(f"v_mov_b32 v{4+k}, {s(STAMP0+2*k)}")
            A(f"buffer_store_dword v{4+k}, v2, {s(SWS,4)}, 0 offen offset:{4*k}")
    A("s_endpgm")

    A.label("L_slow")
    sQT, sKT, sK0, sAD, sPASS = sSL, sSL + 1, sSL + 2, sSL + 3, sSL + 4
    QF, KF, VF, SS, OO, MX, CI = 176, 184, 192, 128, 64, 200, 144
    A("s_waitcnt vmcnt(0) lgkmcnt(0)")
    A(f"s_mov_b32 {s(sQT)}, 0")
    for k in range(8):
        A(f"v_mov_b32 {v(VF+k)}, 0x3F803F80")
    A(f"v_mov_b32 {v(QF+4)}, 0")
    A(f"v_mov_b32 {v(QF+5)}, 0")
    A(f"v_and_b32 v6, 31, {v(vLANE)}")
    A(f"v_lshrrev_b32 v7, 5, {v(vLANE)}")
    A("v_lshlrev_b32 v7, 2, v7")
    A("v_sub_u32 v6, v6, v7")
    A.label("L_slow_q")
    A(f"s_mul_i32 {s(sT0)}, {s(sQT)}, 1280")
    A(f"v_add_u32 v2, {s(sT0)}, {v(vQA)}")
    A(f"v_add_u32 v3, {s(sT0)}, {v(cQB)}")
    A(f"ds_read_b128 {v(QF,4)}, v2")
    A("s_mov_b32 exec_hi, 0")
    A(f"ds_read_b64 {v(QF+4,2)}, v3")
    A("s_mov_b64 exec, -1")
    A(f"s_lshl_b32 {s(sT0)}, {s(sR)}, 2")
    A(f"s_add_u32 {s(sT0)}, {s(sT0)}, {s(sQT)}")
    A(f"s_sub_i32 {s(sK0)}, 8, {s(sT0)}")
    A(f"s_max_i32 {s(sK0)}, {s(sK0)}, 0")
    A(f"v_mov_b32 {v(MX)}, 0xff800000")
    for k in range(16):
        A(f"v_mov_b32 {v(OO+k)}, 0")
    A(f"s_mov_b32 {s(sPASS)}, 0")
    A.label("L_slow_pass")
    A(f"s_mov_b32 {s(sKT)}, {s(sK0)}")
    A.label("L_slow_k")
    A(f"s_add_u32 {s(sT0)}, {s(sQT)}, {s(sKT)}")
    A(f"s_lshr_b32 {s(sT1)}, {s(sT0)}, 2")
    A(f"s_and_b32 {s(sT0)}, {s(sT0)}, 3")
    A(f"s_mul_i32 {s(sT1)}, {s(sT1)}, {8*40960}")
    A(f"s_mul_i32 {s(sT0)}, {s(sT0)}, 1280")
    A(f"s_add_u32 {s(sAD)}, {s(sT0)}, {s(sT1)}")
    A(f"s_add_u32 {s(sAD)}, {s(sAD)}, {s(sKVB)}")
    A(f"s_sub_u32 {s(sAD)}, {s(sAD)}, {16*40960}")
    A(f"s_add_u32 {s(sT1)}, {s(sAD)}, 20480")
    A(f"buffer_load_dwordx4 {v(KF,4)}, {v(cA)}, {s(SWS,4)}, {s(sAD)} offen sc1")
    A(f"buffer_load_dwordx2 {v(KF+4,2)}, {v(cKB)}, {s(SWS,4)}, {s(sAD)} offen sc1")
    A(f"s_mov_b64 exec, {s(sEX,2)}")
    A(f"buffer_load_dwordx4 {v(VF,4)}, {v(cV)}, {s(SWS,4)}, {s(sT1)} offen sc1")
    A(f"buffer_load_dwordx4 {v(VF+4,4)}, {v(cV)}, {s(SWS,4)}, {s(sT1)} offen offset:640 sc1")
    A("s_mov_b64 exec, -1")
    A("s_waitcnt vmcnt(0) lgkmcnt(0)")
    A(f"v_mfma_f32_32x32x16_bf16 {v(SS,16)}, {v(KF,4)}, {v(QF,4)}, 0")
    A(f"v_mfma_f32_32x32x8_bf16 {v(SS,16)}, {v(KF+4,2)}, {v(QF+4,2)}, {v(SS,16)}")
    A(f"s_sub_u32 {s(sT0)}, 8, {s(sKT)}")
    A(f"s_lshl_b32 {s(sT0)}, {s(sT0)}, 5")
    A(f"v_add_u32 v7, {s(sT0)}, v6")
    A("v_mov_b32 v8, 0xff800000")
    A(f"s_mov_b32 {s(sT1)}, 256")
    A("s_nop 9")
    for r_ in range(16):
        i_, j_ = r_ >> 2, r_ & 3
        kap = 16 * (i_ & 1) + 8 * (i_ >> 1) + j_
        A(f"v_subrev_u32 v9, {kap}, v7")
        A(f"v_cmp_gt_u32 vcc, {s(sT1)}, v9")
        A("s_nop 1")
        A(f"v_cndmask_b32 {v(SS+r_)}, v8, {v(SS+r_)}, vcc")
    A(f"s_cmp_eq_u32 {s(sPASS)}, 0")
    A("s_cbranch_scc0 L_slow_p2")
    for r_ in range(16):
        A(f"v_max_f32 {v(MX)}, {v(MX)}, {v(SS+r_)}")
    A("s_branch L_slow_next")
    A.label("L_slow_p2")
    for r_ in range(16):
        A(f"v_sub_f32 {v(SS+r_)}, {v(SS+r_)}, {v(MX)}")
    for r_ in range(16):
        A(f"v_exp_f32 {v(SS+r_)}, {v(SS+r_)}")
    A("s_nop 0")
    for k in range(8):
        A(f"v_cvt_pk_bf16_f32 {v(PP+k)}, {v(SS+2*k)}, {v(SS+2*k+1)}")
    A("s_nop 1")
    A(f"v_mfma_f32_32x32x16_bf16 {v(OO,16)}, {v(VF,4)}, {v(PP,4)}, {v(OO,16)}")
    A(f"v_mfma_f32_32x32x16_bf16 {v(OO,16)}, {v(VF+4,4)}, {v(PP+4,4)}, {v(OO,16)}")
    A("s_nop 15")
    A.label("L_slow_next")
    A(f"s_add_u32 {s(sKT)}, {s(sKT)}, 1")
    A(f"s_cmp_le_u32 {s(sKT)}, 8")
    A("s_cbranch_scc1 L_slow_k")
    A(f"s_cmp_eq_u32 {s(sPASS)}, 0")
    A("s_cbranch_scc0 L_slow_fin")
    A(f"v_mov_b32 v9, {v(MX)}")
    A("s_nop 1")
    A(f"v_permlane32_swap_b32 v9, {v(MX)}")
    A("s_nop 1")
    A(f"v_max_f32 {v(MX)}, {v(MX)}, v9")
    A(f"s_mov_b32 {s(sPASS)}, 1")
    A("s_branch L_slow_pass")
    A.label("L_slow_fin")
    A(f"s_mul_i32 {s(sT0)}, {s(sQT)}, 40960")
    A(f"s_add_u32 {s(sT0)}, {s(sT0)}, {s(sOB)}")
    finalize(OO, s(sT0))
    A("s_waitcnt vmcnt(0)")
    A(f"s_add_u32 {s(sQT)}, {s(sQT)}, 1")
    A(f"s_cmp_lt_u32 {s(sQT)}, 4")
    A("s_cbranch_scc1 L_slow_q")
    A("s_branch L_attn_done")
    A.label("L_exit")
    A("s_endpgm")

    hdr = open("cdna_kernels/" + NAME + ".s.ref").read().split("; Override launch")[0]
    out = hdr
    out += f"; @launch grid=(256,1,1) block=(256,1,1) lds={LDS_BYTES}\n"
    out += f""".amdgcn_target "amdgcn-amd-amdhsa--gfx950"
.text
.globl {NAME}_kernel
.p2align 8
.type {NAME}_kernel,@function
{NAME}_kernel:
"""
    out += A.text()
    out += f""".section .rodata,"a"
.p2align 6
.amdhsa_kernel {NAME}_kernel
  .amdhsa_next_free_vgpr 512
  .amdhsa_next_free_sgpr 102
  .amdhsa_accum_offset 256
  .amdhsa_group_segment_fixed_size 0
  .amdhsa_kernarg_size 72
  .amdhsa_user_sgpr_count 2
  .amdhsa_user_sgpr_kernarg_segment_ptr 1
  .amdhsa_system_sgpr_workgroup_id_x 1
.end_amdhsa_kernel
"""
    return out, names

if __name__ == "__main__":
    cfg = Cfg()
    path = "cdna_kernels/" + NAME + ".s"
    for arg in sys.argv[1:]:
        if arg.startswith("out="): path = arg[4:]
        else:
            k, val = arg.split("=")
            setattr(cfg, k, eval(val))
    text, names = build(cfg)
    open(path, "w").write(text)
    if names: open(path + ".names", "w").write(",".join(names))
    print("wrote", path, len(text), "bytes;", text.count("\n"), "lines; stamps:", names)
```
